```python
import torch

def _softmax(x, axis=-1):
    return torch.softmax(x, dim=axis)
def _gelu(x):
    return torch.nn.functional.gelu(x, approximate="tanh")
def _silu(x):
    return torch.nn.functional.silu(x)
def _sigmoid(x):
    return torch.sigmoid(x)
def _layernorm(x, axis=-1, eps=1e-5):
    m = x.mean(dim=axis, keepdim=True)
    v = x.var(dim=axis, keepdim=True, unbiased=False)
    return (x - m) / torch.sqrt(v + eps)
def _scatter_add(tgt, idx, src, axis=0):
    return tgt.clone().index_add_(axis, idx, src)
def _segment_sum(src, seg, n):
    out = torch.zeros((n,) + src.shape[1:], dtype=src.dtype)
    return out.index_add_(0, seg, src)
def _pad(x, pw):
    flat = tuple(v for pair in reversed(pw) for v in pair)
    return torch.nn.functional.pad(x, flat)

kernel_name = 'parallel_sum__spectral_gfnet__glu_gated_swiglu__prompt'

def setup_inputs():

    _w = (lambda a: (lambda t: t.to(torch.bfloat16) if t.is_floating_point() else t)(torch.as_tensor(a)))
    def _A_setup():
        B, S, D = 1, 2048, 640
        Df = D // 2 + 1
        return {
            "x": _w((lambda *s: torch.randn(*s, dtype=torch.bfloat16) * 0.05)(B, S, D)),
            "w_r": _w((lambda *s: torch.randn(*s, dtype=torch.bfloat16) * 0.4)(S, Df) * 0.02),
            "w_i": _w((lambda *s: torch.randn(*s, dtype=torch.bfloat16) * 0.4)(S, Df) * 0.02),
        }
    _A_in = _A_setup()

    def _B_setup():
        B, S, D, F = 1, 2048, 640, 1536
        return {
            "x": _w((lambda *s: torch.randn(*s, dtype=torch.bfloat16) * 0.05)(B, S, D)),
            "w1": _w((lambda *s: torch.randn(*s, dtype=torch.bfloat16) * 0.2)(D, F) * (2.0 / D) ** 0.5),
            "w3": _w((lambda *s: torch.randn(*s, dtype=torch.bfloat16) * 0.2)(D, F) * (2.0 / D) ** 0.5),
            "w2": _w((lambda *s: torch.randn(*s, dtype=torch.bfloat16) * 0.2)(F, D) * (2.0 / F) ** 0.5),
        }
    _B_in = _B_setup()

    return {
        "A_x": _A_in["x"],
        "A_w_r": _A_in["w_r"],
        "A_w_i": _A_in["w_i"],
        "B_x": _B_in["x"],
        "B_w1": _B_in["w1"],
        "B_w3": _B_in["w3"],
        "B_w2": _B_in["w2"],
    }

def reference(A_x, A_w_r, A_w_i, B_x, B_w1, B_w3, B_w2):
    def _A_ref(x, w_r, w_i):
        B, S, D = x.shape
        X = (lambda x, axes=(-2,-1): torch.fft.rfft2(x.float(), dim=axes))(x, axes=(-2, -1))
        W = w_r + 1j * w_i
        X = X * W
        y = (lambda x, s, axes=(-2,-1): torch.fft.irfft2(x, s=s, dim=axes).to(torch.bfloat16))(X, (S, D), axes=(-2, -1))
        return y

    def _B_ref(x, w1, w3, w2):
        gate = torch.einsum("bsd,df->bsf", x, w1)
        up = torch.einsum("bsd,df->bsf", x, w3)
        h = _silu(gate) * up
        out = torch.einsum("bsf,fd->bsd", h, w2)
        return out

    x = A_x
    xn = _layernorm(x, axis=-1)
    return x + _A_ref(xn, A_w_r, A_w_i) + _B_ref(xn, B_w1, B_w3, B_w2)
```

```python
import re
TRANS = ('v_exp_f32','v_log_f32','v_rcp_f32','v_rsq_f32','v_sqrt_f32','v_sin_f32','v_cos_f32','v_rcp_iflag_f32')
def regs(op):
    op = op.strip()
    op = re.sub(r'^-', '', op); op = re.sub(r'^abs\((.*)\)$', r'\1', op); op = op.strip('|')
    m = re.fullmatch(r'([vsa])(\d+)', op)
    if m: return [(m.group(1), int(m.group(2)))]
    m = re.fullmatch(r'([vsa])\[(\d+):(\d+)\]', op)
    if m: return [(m.group(1), i) for i in range(int(m.group(2)), int(m.group(3)) + 1)]
    if op == 'vcc': return [('s', 106), ('s', 107)]
    if op == 'exec': return [('s', 126), ('s', 127)]
    if op == 'm0': return [('s', 124)]
    return []
def parse(line):
    l = line.split(';')[0].strip()
    if not l or l.endswith(':') or l.startswith('.'): return None
    p = l.split(None, 1)
    name = p[0]; rest = p[1] if len(p) > 1 else ''
    ops = [o.strip() for o in rest.split(',')]
    if ops:
        last = ops[-1].split()
        mods = last[1:] if last else []
        ops[-1] = last[0] if last else ''
    else: mods = []
    base = re.sub(r'_(e32|e64|dpp|sdwa)$', '', name)
    I = dict(name=base, dpp=name.endswith('_dpp') or any(m.startswith(('row_','quad_perm')) for m in mods), mods=mods, w=[], r=[], cls='other', passes=0, srcc=[], ab=[])
    R = [regs(o) for o in ops]
    if base.startswith('v_mfma'):
        I['cls'] = 'mfma'; I['passes'] = 8 if '32x32' in base else 4
        I['w'] = R[0]; I['ab'] = R[1] + R[2]; I['srcc'] = R[3]; I['r'] = R[1] + R[2] + R[3]
    elif base.startswith('v_'):
        I['cls'] = 'valu'
        if base.startswith(('v_swap', 'v_permlane')):
            I['w'] = R[0] + R[1]; I['r'] = R[0] + R[1]
        elif base.startswith('v_cmp'):
            I['w'] = R[0]; I['r'] = sum(R[1:], [])
            if base.startswith('v_cmpx'): I['w'] += regs('exec')
        elif base in ('v_add_co_u32','v_sub_co_u32','v_addc_co_u32','v_subb_co_u32'):
            I['w'] = R[0] + R[1]; I['r'] = sum(R[2:], [])
        else:
            I['w'] = R[0]; I['r'] = sum(R[1:], [])
            if base.startswith(('v_fmac', 'v_dot2c', 'v_pk_fmac', 'v_writelane')) or I['dpp']: I['r'] += R[0]
    elif base.startswith('ds_'):
        I['cls'] = 'ds'
        if base.startswith(('ds_read', 'ds_bpermute', 'ds_permute', 'ds_swizzle')) or '_rtn' in base:
            I['ld'] = R[0]; I['r'] = sum(R[1:], [])
        else: I['r'] = sum(R, [])
    elif base.startswith(('buffer_', 'global_')):
        I['cls'] = 'vmem'
        lds = 'lds' in mods or '_lds_' in base
        if base.startswith(('buffer_inv', 'buffer_wbl2')): pass
        elif 'load' in base and not lds:
            I['ld'] = R[0]; I['r'] = sum(R[1:], [])
            if 'd16' in base: I['r'] += R[0]
        elif lds:
            I['r'] = sum(R, []) + regs('m0'); I['ldsdma'] = True
        else:
            I['r'] = sum(R, [])
            if 'atomic' in base and 'sc0' in mods: I['ld'] = R[0] if base.startswith('buffer') else R[0]
            if base.endswith(('x3', 'x4')) and 'store' in base:
                I['wide'] = R[0] if base.startswith('buffer') else R[1]
    elif base.startswith('s_'):
        I['cls'] = 'salu'
        if base == 's_nop': I['nop'] = int(ops[0], 0) + 1
        elif base.startswith(('s_cmp', 's_cbranch', 's_branch', 's_waitcnt', 's_barrier', 's_sleep', 's_setprio', 's_endpgm')): I['r'] = sum(R, [])
        else:
            I['w'] = R[0]; I['r'] = sum(R[1:], [])
            if 'saveexec' in base: I['w'] += regs('exec')
    return I
def need(P, C):
    n = 0
    pw = set(P['w']); cr = set(C['r']); cw = set(C['w']) | set(C.get('ld', []))
    pv = {x for x in pw if x[0] != 's'}; ps = {x for x in pw if x[0] == 's'}
    if P['cls'] == 'valu':
        if C['cls'] == 'mfma' and pv & cr: n = max(n, 2)
        if C['cls'] == 'mfma' and ('s', 126) in ps: n = max(n, 4)
        if C['cls'] == 'valu':
            if C['dpp'] and pv & cr: n = max(n, 2)
            if C['dpp'] and ('s', 126) in ps: n = max(n, 5)
            if C['name'].startswith('v_permlane') and pv & cr: n = max(n, 2)
            if C['name'].startswith(('v_readfirstlane', 'v_readlane')) and pv & cr: n = max(n, 1)
            if C['name'].startswith(('v_readfirstlane', 'v_readlane', 'v_writelane', 'v_permlane')) and ('s', 126) in ps: n = max(n, 4)
            if ps & cr: n = max(n, 4 if C['name'].startswith(('v_readlane', 'v_writelane')) else 2)
            if C['name'].startswith(('v_cndmask', 'v_addc', 'v_subb')) and ('s', 106) in ps and len(C['r']) < 99: n = max(n, 2)
            if P['name'] in TRANS and C['name'] not in TRANS and pv & cr: n = max(n, 1)
        if P['name'] in TRANS and C['cls'] in ('ds', 'vmem', 'mfma') and pv & cr: n = max(n, 2)
        if C['cls'] == 'vmem' and ps & cr: n = max(n, 5)
    if P['cls'] == 'salu' and ('s', 124) in ps and C.get('ldsdma'): n = max(n, 1)
    if P.get('wide') and C['cls'] == 'valu' and set(P['wide']) & cw: n = max(n, 2)
    if P.get('wide') and C['cls'] != 'valu' and set(P['wide']) & cw: n = max(n, 1)
    if P['cls'] == 'mfma':
        k = P['passes']
        if C['cls'] == 'mfma':
            if pv & set(C['ab']): n = max(n, k + 4)
            if pv & set(C['srcc']):
                if not (C['srcc'] == P['w'] and C['passes'] == k): n = max(n, k + 2)
            elif pv & set(C['w']): n = max(n, k + 2)
        else:
            if pv & (cr | cw): n = max(n, k + 4)
            if C['cls'] == 'valu' and set(P['srcc']) & cw: n = max(n, k - 1)
    return n
def _pass(lines, pending_in, verbose):
    out = []; hist = []; added = 0; pending = {}
    for line in lines:
        st = line.split(';')[0].strip()
        if st.endswith(':'):
            L = st[:-1]
            for src in (pending.get(L, []), pending_in.get(L, [])):
                for h in src: hist.append([h[0], h[1]])
            out.append(line); continue
        I = parse(line)
        if I is None:
            out.append(line); continue
        req = 0
        for P, d in hist:
            q = need(P, I) - d
            if q > req: req = q
        if req > 0:
            added += req
            if verbose: print('nop', req, 'before', line.strip())
            r = req
            while r > 0:
                k = min(r, 16); out.append('    s_nop %d' % (k - 1)); r -= k
            for h in hist: h[1] += req
        out.append(line)
        step = I.get('nop', 1)
        for h in hist: h[1] += step
        hist = [h for h in hist if h[1] < 20]
        if I['name'].startswith(('s_cbranch', 's_branch')):
            L = st.split()[1]
            pending.setdefault(L, []).extend([[h[0], h[1]] for h in hist])
        if I['name'] in ('s_branch', 's_endpgm'): hist = []
        elif 'nop' not in I: hist.append([I, 0])
    return out, added, pending
def fix(lines, verbose=False):
    o1, a1, pend = _pass(lines, {}, False)
    o2, a2, _ = _pass(lines, pend, verbose)
    return o2, a2
```

```python
import math, struct, sys
from asmlib import *
import hazard
KN = 'parallel_sum__spectral_gfnet__glu_gated_swiglu__prompt'
def fl(x): return '0x%08x' % struct.unpack('<I', struct.pack('<f', x))[0]

XD, VV, HH, W2F, XA, CS, ST = 0, 0x300000, 0x600000, 0xC00000, 0xE00000, 0x1100000, 0x1140000
F1, FA, F2, F3, FH = 0x1150000, 0x1150400, 0x1150800, 0x1151000, 0x1152000
STAMP = 0x2000000
WP, WM, CNT = 49152, 98304, 122880
AUXC, AUXS, SA = 123392, 124928, 125952
PL, ZB, C0X, W2S = SA, SA + 10240, SA + 20480, SA + 26624
E1, E2, OT = SA, SA + 16384, SA + 10240
LDS_BYTES = 163840
C_FULL, C_FREE, C_PFULL, C_PFREE, C_AUX, C_RED, C_NONCE = 0, 16, 32, 56, 68, 69, 70
C_P1Z, C_P1PUB, C_C0X, C_AUXPUB, C_P2GO, C_P2X1, C_P2X2, C_P2PUB, C_P3GO, C_P3PL, C_P3PUB = range(72, 83)
NST = 10
S_WAVE, S_XCD, S_IDX, S_MT, S_NT, S_J, S_SPIN, S_NONCE, S_T0, S_T1, S_T2, S_T3 = 3, 30, 31, 32, 33, 34, 35, 36, 37, 38, 39, 40
KA = 64
R_X, R_W1, R_W3, R_WS, R_A, R_B = 's[4:7]', 's[8:11]', 's[12:15]', 's[16:19]', 's[20:23]', 's[24:27]'
SPINMAX = 0x200000

class Gen:
    def __init__(self, fused=True, stamps=False, opt=None):
        self.A = Asm(); self.fused = fused; self.stamps = stamps; self.o = opt or {}
        self.pre = ''
    def L(self, n): return self.pre + n
    def srd(self, base, ka, nbytes):
        self.A(f's_mov_b32 s{base}, s{KA+2*ka}\ns_mov_b32 s{base+1}, s{KA+2*ka+1}\ns_mov_b32 s{base+2}, {nbytes}\ns_mov_b32 s{base+3}, 0x20000')
    def arrive(self, word, reg='v1'):
        return f's_mov_b64 exec, 1\nds_add_u32 {reg}, v2 offset:{4*word}\ns_mov_b64 exec, -1'
    def wait(self, word, tgt, reg='v1', sleep=0, ne=False):
        A = self.A; lab = A.newlabel(self.L('Lw'))
        A(f'{lab}:\nds_read_b32 v3, {reg} offset:{4*word}\ns_waitcnt lgkmcnt(0)\nv_readfirstlane_b32 s{S_T0}, v3')
        A(f's_add_u32 s{S_SPIN}, s{S_SPIN}, 1')
        A(f's_cmp_lg_u32 s{S_T0}, 0' if ne else f's_cmp_eq_u32 s{S_T0}, {tgt}')
        A(f's_cbranch_scc1 {lab}_x')
        if sleep: A(f's_sleep {sleep}')
        A(f's_cmp_lt_u32 s{S_SPIN}, {SPINMAX}\ns_cbranch_scc1 {lab}\n{lab}_x:')
    def sync(self, word, sleep=0):
        self.A('s_waitcnt lgkmcnt(0)\n' + self.arrive(word)); self.wait(word, 4, sleep=sleep)
    def get_nonce(self):
        if not self.fused: return
        self.wait(C_NONCE, 0, ne=True); self.A(f's_mov_b32 s{S_NONCE}, s{S_T0}')
    def gpoll(self, voff, width, execmask, tmp, sleep=2):
        if not self.fused: return
        A = self.A; lab = A.newlabel(self.L('Lg'))
        if execmask is not None:
            A(f's_mov_b32 exec_lo, {execmask & 0xffffffff}\ns_mov_b32 exec_hi, {execmask >> 32}')
        sfx = {1: '', 2: 'x2', 4: 'x4'}[width]
        A(f'{lab}:\nbuffer_load_dword{sfx} {v(tmp, width)}, {voff}, {R_WS}, 0 offen sc1\ns_waitcnt vmcnt(0)')
        A(f'v_cmp_ne_u32 vcc, s{S_NONCE}, v{tmp}')
        for i in range(1, width):
            A(f'v_cmp_ne_u32 s[60:61], s{S_NONCE}, v{tmp+i}\ns_or_b64 vcc, vcc, s[60:61]')
        A(f's_add_u32 s{S_SPIN}, s{S_SPIN}, 1\ns_cmp_eq_u64 vcc, 0\ns_cbranch_scc1 {lab}_x')
        A(f's_sleep {sleep}\ns_cmp_lt_u32 s{S_SPIN}, {SPINMAX}\ns_cbranch_scc1 {lab}\n{lab}_x:')
        if execmask is not None: A('s_mov_b64 exec, -1')
    def publish_group(self, word, soff):
        A = self.A
        if not self.fused:
            return
        lab = A.newlabel(self.L('Lpub'))
        A(f'''s_waitcnt vmcnt(0)
        s_mov_b64 exec, 1
        ds_add_rtn_u32 v3, v1, v2 offset:{4*word}
        s_waitcnt lgkmcnt(0)
        v_readfirstlane_b32 s{S_T0}, v3
        s_cmp_lg_u32 s{S_T0}, 3
        s_cbranch_scc1 {lab}
        v_mov_b32 v3, s{S_NONCE}
        buffer_store_dword v3, off, {R_WS}, {soff} sc1
        {lab}:
        s_mov_b64 exec, -1''')
    def stamp(self, k):
        if self.stamps: self.A(f's_memrealtime s[{84+2*k}:{85+2*k}]')
    def stamp_out(self):
        if not self.stamps: return
        A = self.A
        A(f'''s_waitcnt lgkmcnt(0)
        s_mul_i32 s{S_T0}, s2, 12
        s_add_u32 s{S_T0}, s{S_T0}, s{S_WAVE}
        s_lshl_b32 s{S_T0}, s{S_T0}, 6
        s_add_u32 s{S_T0}, s{S_T0}, {STAMP}''')
        for k in range(8):
            A(f'v_mov_b32 v3, s{84+2*k}\nbuffer_store_dword v3, off, {R_WS}, s{S_T0} offset:{4*k}')
        A(f'v_mov_b32 v3, s{S_SPIN}\nbuffer_store_dword v3, off, {R_WS}, s{S_T0} offset:32')
    def kernel(self, name, sec):
        A = self.A; self.pre = name[-8:-7] if False else ('k%d_' % len(self.names)); self.names.append(name); self.sec = sec
        A.raw(f'.globl {name}\n.p2align 8\n.type {name},@function\n{name}:')
        A(f'''s_cmp_ge_u32 s2, 256
        s_cbranch_scc1 {self.L('end')}
        s_load_dwordx16 s[{KA}:{KA+15}], s[0:1], 0
        s_load_dwordx4 s[{KA+16}:{KA+19}], s[0:1], 64''')
        if self.stamps:
            for k in range(8): A(f's_mov_b32 s{84+2*k}, 0')
        self.stamp(0)
        A(f'''v_lshrrev_b32 v1, 6, v0
        v_and_b32 v0, 63, v0
        v_readfirstlane_b32 s{S_WAVE}, v1
        s_and_b32 s{S_XCD}, s2, 7
        s_lshr_b32 s{S_IDX}, s2, 3
        s_lshr_b32 s{S_T0}, s{S_XCD}, 2
        s_lshl_b32 s{S_T0}, s{S_T0}, 3
        s_and_b32 s{S_MT}, s{S_IDX}, 7
        s_add_u32 s{S_MT}, s{S_MT}, s{S_T0}
        s_and_b32 s{S_T0}, s{S_XCD}, 3
        s_lshl_b32 s{S_T0}, s{S_T0}, 2
        s_lshr_b32 s{S_NT}, s{S_IDX}, 3
        s_add_u32 s{S_NT}, s{S_NT}, s{S_T0}
        s_lshl_b32 s{S_J}, s{S_XCD}, 5
        s_add_u32 s{S_J}, s{S_J}, s{S_IDX}
        s_mov_b32 s{S_SPIN}, 0
        v_mov_b32 v1, {CNT}
        v_mov_b32 v2, 1
        s_cmp_lt_u32 s{S_WAVE}, 4
        s_cbranch_scc1 {self.L('G')}
        s_cmp_lt_u32 s{S_WAVE}, 8
        s_cbranch_scc1 {self.L('Lr')}''')
        self.role_S()
        A(f's_branch {self.L("fin")}')
        A(self.L('Lr') + ':'); self.role_L()
        A(f's_branch {self.L("fin")}')
        A(self.L('G') + ':'); self.role_G()
        A(self.L('fin') + ':')
        self.stamp(7); self.stamp_out()
        A(f'{self.L("end")}:\ns_endpgm')
    def build(self, kernels):
        A = self.A; self.names = []
        head = []
        if len(kernels) == 1: head.append(f'; @launch grid=(256,1,1) block=(768,1,1) lds={LDS_BYTES}')
        else:
            for n, _ in kernels: head.append(f'; @launch kernel={n} grid=(256,1,1) block=(768,1,1) lds={LDS_BYTES}')
        A.raw('.amdgcn_target "amdgcn-amd-amdhsa--gfx950"\n.text')
        for n, sec in kernels: self.kernel(n, sec)
        lines = []
        for l in A.lines: lines += l.split('\n')
        lines, added = hazard.fix(lines)
        self.nops = added
        txt = '\n'.join(head) + '\n' + '\n'.join(lines) + '\n.section .rodata,"a"\n'
        for n, _ in kernels: txt += '.p2align 6\n' + kd(n, 168)
        return txt
    def role_L(self):
        A = self.A; sec = self.sec
        SV = 41
        MX, MP, MM, OX, OW = 42, 43, 44, 45, 46
        A(f's_sub_u32 s{SV}, s{S_WAVE}, 4')
        A(f'''s_lshl_b32 s{MX}, s{SV}, 12
        s_lshl_b32 s{MP}, s{SV}, 11
        s_add_u32 s{MP}, s{MP}, {WP}
        s_lshl_b32 s{MM}, s{SV}, 10
        s_add_u32 s{MM}, s{MM}, {WM}''')
        def m0list(buf):
            return ([(MP, m*24576 + buf*8192 + i*1024) for m in range(2) for i in range(2)] +
                    [(MM, m*12288 + buf*4096) for m in range(2)] + [(MX, buf*16384 + q*1024) for q in range(4)])
        self.m0list = m0list
        if 'g1' in sec:
            A(f'''v_lshrrev_b32 v12, 3, v0
            s_lshl_b32 s{S_T0}, s{S_MT}, 4
            s_lshl_b32 s{S_T1}, s{SV}, 9
            s_add_u32 s{S_T0}, s{S_T0}, s{S_T1}
            v_add_u32 v13, s{S_T0}, v12
            v_mul_u32_u24 v13, 1280, v13
            v_lshrrev_b32 v14, 4, v0
            v_and_b32 v15, 7, v0
            v_xor_b32 v16, v15, v14
            v_xor_b32 v17, 4, v16
            v_lshl_add_u32 v4, v16, 4, v13
            v_lshl_add_u32 v5, v17, 4, v13
            v_add_u32 v5, {8*1280}, v5
            v_add_u32 v6, {256*1280}, v4
            v_add_u32 v7, {256*1280}, v5
            s_lshl_b32 s{S_T1}, s{SV}, 4
            v_add_u32 v13, s{S_T1}, v12
            v_mul_u32_u24 v13, 3072, v13
            v_bfe_u32 v14, v0, 4, 1
            v_lshlrev_b32 v14, 2, v14
            v_xor_b32 v14, v14, v15
            v_lshl_add_u32 v13, v14, 4, v13
            s_and_b32 s{S_T2}, s{S_NT}, 1
            s_lshl_b32 s{S_T0}, s{S_T2}, 6
            s_mul_i32 s{S_T3}, s{S_NT}, 192
            s_add_u32 s{S_T0}, s{S_T0}, s{S_T3}
            v_add_u32 v8, s{S_T0}, v13
            v_add_u32 v9, {8*3072}, v8
            v_lshrrev_b32 v13, 2, v0
            v_add_u32 v13, s{S_T1}, v13
            v_mul_u32_u24 v13, 3072, v13
            s_xor_b32 s{S_T2}, s{S_T2}, 1
            s_lshl_b32 s{S_T2}, s{S_T2}, 7
            s_add_u32 s{S_T2}, s{S_T2}, s{S_T3}
            v_add_u32 v13, s{S_T2}, v13
            v_and_b32 v14, 3, v0
            v_lshl_add_u32 v10, v14, 4, v13
            v_xor_b32 v14, 2, v14
            v_lshl_add_u32 v11, v14, 4, v13
            s_mov_b32 s{OX}, 0
            s_mov_b32 s{OW}, 0''')
        A('s_waitcnt lgkmcnt(0)')
        self.srd(4, 0, 2621440); self.srd(8, 4, 1966080); self.srd(12, 5, 1966080); self.srd(16, 9, 0x10000000)
        xf = self.o.get('xflag', ''); wf = self.o.get('wflag', '')
        def dmas(buf):
            ml = m0list(buf)
            src = [('v8', R_W1, OW, wf), ('v9', R_W1, OW, wf), ('v8', R_W3, OW, wf), ('v9', R_W3, OW, wf), ('v10', R_W1, OW, wf), ('v11', R_W3, OW, wf)] + [(f'v{4+q}', R_X, OX, xf) for q in range(4)]
            for (b, off), (vo, srd, so, fg) in zip(ml, src):
                A(f's_add_u32 m0, s{b}, {off}\nbuffer_load_dwordx4 {vo}, {srd}, s{so} offen {fg} lds')
            A(f's_add_u32 s{OX}, s{OX}, 128\ns_add_u32 s{OW}, s{OW}, 196608')
        if 'g1' in sec:
            dmas(0); dmas(1)
            A('s_barrier')
            A('s_waitcnt vmcnt(10)\n' + self.arrive(C_FULL))
            self.stamp(1)
            dmas(2)
            A('s_waitcnt vmcnt(10)\n' + self.arrive(C_FULL + 1))
            A(f'v_mov_b32 v12, {CNT}\ns_mov_b32 s47, 3\n{self.L("lloop")}:')
            for b in range(3):
                self.wait(C_FREE, 4, reg='v12')
                dmas(b)
                A('s_waitcnt vmcnt(10)\n' + self.arrive(C_FULL + 2, 'v12'))
                A('v_add_u32 v12, 4, v12\ns_add_u32 s47, s47, 1')
                if b == 0: A(f's_cmp_eq_u32 s47, {NST}\ns_cbranch_scc1 {self.L("ldone")}')
            A(f's_branch {self.L("lloop")}\n{self.L("ldone")}:')
            A('s_waitcnt vmcnt(0)\n' + self.arrive(C_FULL + 9))
            self.stamp(2)
            self.get_nonce()
            A(f'v_lshlrev_b32 v12, 4, v0\nv_add_u32 v13, {FA}, v12')
            self.gpoll('v13', 4, None, 16)
            self.stamp(3)
            lab = self.L('lstat'); jn = self.L('lauxj')
            A(f's_cmp_eq_u32 s{SV}, 3\ns_cbranch_scc1 {lab}')
            A(f'''s_mul_i32 s{S_T0}, s{S_NT}, {16*768}
            s_lshl_b32 s{S_T1}, s{SV}, 8
            s_add_u32 s{S_T0}, s{S_T0}, s{S_T1}
            s_add_u32 s{S_T0}, s{S_T0}, {CS}
            v_lshlrev_b32 v13, 2, v0
            v_add_u32 v13, s{S_T0}, v13
            v_add_u32 v14, {5*768}, v13
            v_add_u32 v15, {10*768}, v13''')
            for p in range(16):
                g = min(p // 5, 2)
                A(f'buffer_load_dword v{16+p}, v{13+g}, {R_WS}, 0 offen offset:{(p-5*g)*768} sc1')
            A('s_waitcnt vmcnt(0)')
            for st in (8, 4, 2, 1):
                for p in range(st): A(f'v_add_f32 v{16+p}, v{16+p}, v{16+p+st}')
            A(f'''v_and_b32 v17, 0xffff0000, v16
            v_sub_f32 v18, v16, v17
            v_and_b32 v19, 0xffff0000, v18
            v_sub_f32 v18, v18, v19
            v_lshrrev_b32 v17, 16, v17
            v_or_b32 v20, v17, v19
            v_lshrrev_b32 v21, 16, v18
            v_lshlrev_b32 v13, 3, v0
            s_lshl_b32 s{S_T1}, s{SV}, 9
            s_add_u32 s{S_T1}, s{S_T1}, {AUXC}
            v_add_u32 v13, s{S_T1}, v13
            ds_write_b64 v13, v[20:21]
            s_branch {jn}
            {lab}:
            s_lshl_b32 s{S_T0}, s{S_MT}, 10
            s_add_u32 s{S_T0}, s{S_T0}, {ST}
            buffer_load_dwordx4 v[16:19], v12, {R_WS}, s{S_T0} offen sc1
            v_add_u32 v13, {AUXS}, v12
            s_waitcnt vmcnt(0)
            ds_write_b128 v13, v[16:19]
            {jn}:
            s_waitcnt lgkmcnt(0)''')
            A(self.arrive(C_AUX))
        else:
            A('s_barrier')
        if 'g2' in sec:
            A(f'''v_lshlrev_b32 v12, 4, v0
            s_and_b32 s{S_T0}, s{S_IDX}, 7
            s_mul_i32 s{S_T0}, s{S_T0}, 48
            s_mul_i32 s{S_T1}, s{SV}, 12
            s_add_u32 s{S_T0}, s{S_T0}, s{S_T1}
            s_mul_i32 s{OW}, s{S_T0}, 5120
            s_add_u32 s{OW}, s{OW}, {W2F}
            s_lshl_b32 s{S_T1}, s{SV}, 2
            v_mov_b32 v13, {CNT}
            v_add_u32 v13, s{S_T1}, v13''')
            for i in range(6):
                if i < 3:
                    if 'g1' in sec: self.wait(C_FREE + 7 + i, 4)
                else: self.wait(C_PFREE + 4*(i-3), 1, reg='v13')
                for (b, off) in m0list((1 + i) % 3):
                    A(f's_add_u32 m0, s{b}, {off}\nbuffer_load_dwordx4 v12, {R_WS}, s{OW} offen sc1 lds\ns_add_u32 s{OW}, s{OW}, 1024')
                if i and i != 3: A('s_waitcnt vmcnt(10)\n' + self.arrive(C_PFULL + 4*(i-1), 'v13'))
                if i == 2: A('s_waitcnt vmcnt(0)\n' + self.arrive(C_PFULL + 4*2, 'v13')); self.stamp(4)
            A('s_waitcnt vmcnt(0)\n' + self.arrive(C_PFULL + 4*5, 'v13'))
            A('s_waitcnt lgkmcnt(0)')
    def role_G(self):
        A = self.A; sec = self.sec
        WMs, WNs = 41, 42
        A(f'''v_mov_b32 v4, 0
        v_mov_b32 v5, 0
        v_lshlrev_b32 v3, 3, v0
        v_add_u32 v3, {CNT}, v3
        ds_write_b64 v3, v[4:5]
        s_and_b32 s{WMs}, s{S_WAVE}, 1
        s_lshr_b32 s{WNs}, s{S_WAVE}, 1
        s_waitcnt lgkmcnt(0)
        s_barrier''')
        self.srd(16, 9, 0x10000000)
        if self.fused:
            nx = self.L('nonce_x'); pl = self.L('nonce_p'); got = self.L('nonce_g')
            A(f'''s_cmp_lg_u32 s{S_WAVE}, 0
            s_cbranch_scc1 {nx}
            s_mov_b64 exec, 1
            v_mov_b32 v6, 0
            s_cmp_lg_u32 s{S_IDX}, 0
            s_cbranch_scc1 {pl}
            s_memrealtime s[{S_T1}:{S_T1+1}]
            s_waitcnt lgkmcnt(0)
            s_or_b32 s{S_T1}, s{S_T1}, 1
            v_mov_b32 v4, s{S_T1}
            global_atomic_cmpswap v3, v6, v[4:5], s[{KA+16}:{KA+17}] sc0 sc1
            s_waitcnt vmcnt(0)
            v_readfirstlane_b32 s{S_T0}, v3
            s_cmp_eq_u32 s{S_T0}, 0
            s_cselect_b32 s{S_T0}, s{S_T1}, s{S_T0}
            s_branch {got}
            {pl}:
            global_load_dword v3, v6, s[{KA+16}:{KA+17}] sc1
            s_waitcnt vmcnt(0)
            v_readfirstlane_b32 s{S_T0}, v3
            s_add_u32 s{S_SPIN}, s{S_SPIN}, 1
            s_cmp_lg_u32 s{S_T0}, 0
            s_cbranch_scc1 {got}
            s_sleep 4
            s_cmp_lt_u32 s{S_SPIN}, {SPINMAX}
            s_cbranch_scc1 {pl}
            s_mov_b32 s{S_T0}, 1
            {got}:
            v_mov_b32 v3, s{S_T0}
            ds_write_b32 v1, v3 offset:{4*C_NONCE}
            s_mov_b64 exec, -1
            {nx}:''')
        if 'g1' in sec: self.gemm1(WMs, WNs)
        if 'g2' in sec: self.gemm2()
    def gemm1(self, WMs, WNs):
        A = self.A
        ACC, FR, XAr, WAr = 72, 12, 4, 8
        A(f'''v_and_b32 v12, 31, v0
        v_lshrrev_b32 v13, 5, v0
        v_bfe_u32 v14, v12, 1, 3
        v_xor_b32 v14, v14, v13
        s_lshl_b32 s{S_T0}, s{WMs}, 13
        v_lshlrev_b32 v12, 7, v12
        v_add_u32 v12, s{S_T0}, v12''')
        for ks in range(4):
            A(f'v_xor_b32 v15, {2*ks}, v14\nv_lshl_add_u32 v{XAr+ks}, v15, 4, v12')
        A(f'''v_bfe_u32 v12, v0, 2, 2
        v_lshl_add_u32 v12, v13, 3, v12
        v_and_b32 v14, 3, v0
        v_lshlrev_b32 v14, 3, v14
        v_bfe_u32 v15, v0, 4, 1
        v_bfe_u32 v16, v0, 3, 1
        v_xor_b32 v16, s{WNs}, v16
        v_lshlrev_b32 v16, 6, v16
        v_lshl_add_u32 v16, v12, 7, v16
        v_lshl_add_u32 v16, v15, 5, v16
        v_add_u32 v16, v16, v14
        v_add_u32 v{WAr}, {WP}, v16
        v_xor_b32 v16, s{WNs}, v15
        v_lshlrev_b32 v16, 5, v16
        v_lshl_add_u32 v16, v12, 6, v16
        v_add_u32 v16, v16, v14
        v_mul_u32_u24 v15, 12288, v15
        v_add_u32 v16, v16, v15
        v_add_u32 v{WAr+1}, {WM}, v16
        v_mov_b32 v10, {CNT}''')
        for i in range(96): A(f'v_mov_b32 v{ACC+i}, 0')
        def reads(buf, ks, st):
            b = FR + 20*st; L = []
            for tt in range(2): L.append(f'ds_read_b128 {v(b+4*tt,4)}, v{XAr+ks} offset:{buf*16384 + tt*4096}')
            for t in range(3):
                for rd in range(2):
                    if t < 2: L.append(f'ds_read_b64_tr_b16 {v(b+8+4*t+2*rd,2)}, v{WAr} offset:{t*24576 + buf*8192 + ks*2048 + rd*512}')
                    else: L.append(f'ds_read_b64_tr_b16 {v(b+8+4*t+2*rd,2)}, v{WAr+1} offset:{buf*4096 + ks*1024 + rd*256}')
            return L
        def mfmas(st):
            b = FR + 20*st; L = []
            for t in range(3):
                for tt in range(2):
                    c = ACC + 16*(2*t+tt)
                    L.append(f'v_mfma_f32_32x32x16_bf16 {v(c,16)}, {v(b+8+4*t,4)}, {v(b+4*tt,4)}, {v(c,16)}')
            return L
        self.wait(C_FULL, 4)
        self.stamp(1)
        if self.o.get('gprio'): A(f's_setprio {self.o["gprio"]}')
        def body(sm, last):
            buf = sm; nb = (sm+1) % 3; st = lambda kk: (sm + kk) % 3
            A('s_waitcnt lgkmcnt(8)')
            for x in interleave(mfmas(st(0)), reads(buf, 2, st(2))): A(x)
            A('s_waitcnt lgkmcnt(8)')
            for x in interleave(mfmas(st(1)), reads(buf, 3, st(3))): A(x)
            A('s_waitcnt lgkmcnt(8)')
            m = mfmas(st(2))
            A(m[0]); A(f'ds_read_b32 v11, v10 offset:{4*(C_FULL+1)}'); A(m[1])
            A('s_waitcnt lgkmcnt(1)\n' + self.arrive(C_FREE, 'v10'))
            A(m[2]); A(m[3]); A('s_add_u32 s47, s47, 1'); A(m[4])
            A(f's_waitcnt lgkmcnt(1)\nv_readfirstlane_b32 s{S_T1}, v11\nv_add_u32 v10, 4, v10')
            A(m[5])
            if last: A(f's_cmp_eq_u32 s47, {NST}\ns_cbranch_scc1 {self.L("glast")}')
            sk = A.newlabel(self.L('Lsk'))
            A(f's_cmp_eq_u32 s{S_T1}, 4\ns_cbranch_scc1 {sk}')
            self.wait(C_FULL, 4, reg='v10')
            A(sk + ':')
            for x in interleave(mfmas(st(3)), reads(nb, 0, (sm+1) % 3) + reads(nb, 1, (sm+2) % 3)): A(x)
        A('s_mov_b32 s47, 0')
        for x in reads(0, 0, 0) + reads(0, 1, 1): A(x)
        A(f's_branch {self.L("gb0")}\n{self.L("gloop")}:')
        body(1, False); body(2, False)
        A(self.L('gb0') + ':')
        body(0, True)
        A(f's_branch {self.L("gloop")}\n{self.L("glast")}:')
        for x in mfmas(0): A(x)
        self.stamp(2)
        B = FR + 20
        T = FR + 40
        A(f'''s_and_b32 s{S_T2}, s{S_NT}, 1
        s_add_u32 s{S_T3}, s{S_T2}, s{WNs}
        s_lshl_b32 s{S_T3}, s{S_T3}, 8
        s_add_u32 s{S_T3}, s{S_T3}, {AUXC}
        v_and_b32 v{T}, 31, v0
        v_lshlrev_b32 v{T}, 3, v{T}
        v_add_u32 v{T+1}, s{S_T3}, v{T}
        s_xor_b32 s{S_T3}, s{S_T2}, 1
        s_lshl_b32 s{S_T3}, s{S_T3}, 9
        s_lshl_b32 s43, s{WNs}, 7
        s_add_u32 s{S_T3}, s{S_T3}, s43
        s_add_u32 s{S_T3}, s{S_T3}, {AUXC}
        v_and_b32 v{T+2}, 15, v0
        v_lshlrev_b32 v{T+2}, 3, v{T+2}
        v_bfe_u32 v{T+3}, v0, 4, 1
        v_mul_u32_u24 v{T+3}, 768, v{T+3}
        v_add3_u32 v{T+2}, v{T+2}, v{T+3}, s{S_T3}
        s_lshl_b32 s{S_T3}, s{WMs}, 9
        s_add_u32 s{S_T3}, s{S_T3}, {AUXS}
        v_add_u32 v{T+3}, s{S_T3}, v{T}''')
        for r in (2, 3, 6, 7, 10, 11, 14, 15, 18, 19): A(f'v_mov_b32 v{B+r}, 0')
        self.wait(C_AUX, 4)
        A(f'''ds_read_b64 {v(T+4,2)}, v{T+3}
        ds_read_b64 {v(T+6,2)}, v{T+3} offset:256
        ds_read_b64 {v(B+8,2)}, v{T+1}
        ds_read_b64 {v(B+12,2)}, v{T+1} offset:768
        ds_read_b64 {v(B+16,2)}, v{T+2}
        v_cmp_gt_u32 vcc, 32, v0
        s_waitcnt lgkmcnt(3)''')
        for tt in range(2):
            A(f'''v_cvt_pk_bf16_f32 v{B+4*tt}, -v{T+4+2*tt}, -v{T+4+2*tt}
            v_cndmask_b32 v{B+4*tt}, 0, v{B+4*tt}, vcc
            v_and_b32 v{B+4*tt+1}, 0xffff, v{B+4*tt}''')
        A('s_waitcnt lgkmcnt(0)')
        for x in mfmas(1): A(x)
        Kc, Qc = T + 8, T + 12
        for tt in range(2):
            A(f'''v_rcp_f32 v{Kc+2*tt}, v{T+5+2*tt}
            v_mul_f32 v{Qc+2*tt}, v{T+5+2*tt}, v{T+5+2*tt}
            v_mov_b32 v{Qc+2*tt+1}, v{Qc+2*tt}
            v_mul_f32 v{Kc+2*tt}, {fl(-math.log2(math.e))}, v{Kc+2*tt}
            v_mov_b32 v{Kc+2*tt+1}, v{Kc+2*tt}''')
        A(f'''s_lshl_b32 s{S_T3}, s{S_MT}, 3
        s_lshl_b32 s43, s{WMs}, 2
        s_add_u32 s{S_T3}, s{S_T3}, s43
        s_mul_i32 s{S_T3}, s{S_T3}, 49152
        s_add_u32 s{S_T3}, s{S_T3}, {HH}
        s_mul_i32 s43, s{S_NT}, 3
        s_add_u32 s44, s43, s{S_T2}
        s_add_u32 s44, s44, s{WNs}
        s_lshl_b32 s44, s44, 10
        s_add_u32 s44, s44, s{S_T3}
        s_xor_b32 s45, s{S_T2}, 1
        s_lshl_b32 s45, s45, 1
        s_add_u32 s45, s45, s43
        s_lshl_b32 s45, s45, 10
        s_lshl_b32 s46, s{WNs}, 9
        s_add_u32 s45, s45, s46
        s_add_u32 s45, s45, s{S_T3}
        v_bfe_u32 v4, v0, 4, 1
        v_mul_u32_u24 v4, 49152, v4
        v_lshrrev_b32 v5, 5, v0
        v_lshl_add_u32 v4, v5, 8, v4
        v_and_b32 v5, 15, v0
        v_lshl_add_u32 v4, v5, 4, v4
        v_add_u32 v5, {2*49152}, v4''')
        grp = 0
        for tt in range(2):
            for (g0, u0, so, off) in ((ACC+16*tt, ACC+32+16*tt, 44, 0), (ACC+16*tt+8, ACC+32+16*tt+8, 44, 512), (ACC+64+16*tt, ACC+64+16*tt+8, 45, 0)):
                E = FR + 8*(grp % 2); O = FR + 16 + 4*(grp % 2) if False else (FR + 16 if grp % 2 == 0 else T + 16)
                for p in range(4): A(f'v_pk_mul_f32 {v(E+2*p,2)}, {v(g0+2*p,2)}, {v(Kc+2*tt,2)}')
                for p in range(8): A(f'v_exp_f32 v{E+p}, v{E+p}')
                for p in range(4): A(f'v_pk_mul_f32 {v(g0+2*p,2)}, {v(g0+2*p,2)}, {v(u0+2*p,2)}')
                for p in range(4): A(f'v_pk_fma_f32 {v(E+2*p,2)}, {v(E+2*p,2)}, {v(Qc+2*tt,2)}, {v(Qc+2*tt,2)}')
                for p in range(8): A(f'v_rcp_f32 v{E+p}, v{E+p}')
                for p in range(4): A(f'v_pk_mul_f32 {v(g0+2*p,2)}, {v(g0+2*p,2)}, {v(E+2*p,2)}')
                for p in range(4): A(f'v_cvt_pk_bf16_f32 v{O+p}, v{g0+2*p}, v{g0+2*p+1}')
                A(f'buffer_store_dwordx4 {v(O,4)}, v{4+tt}, {R_WS}, s{so} offen offset:{off} sc1')
                grp += 1
        self.stamp(3)
        if self.fused:
            self.get_nonce()
            A(f'''s_lshl_b32 s{S_T3}, s{S_MT}, 1
            s_add_u32 s{S_T3}, s{S_T3}, s{WMs}
            s_lshl_b32 s{S_T3}, s{S_T3}, 2
            s_lshr_b32 s43, s{S_NT}, 2
            s_add_u32 s{S_T3}, s{S_T3}, s43
            s_lshl_b32 s{S_T3}, s{S_T3}, 7
            s_and_b32 s43, s{S_NT}, 3
            s_lshl_b32 s43, s43, 1
            s_add_u32 s43, s43, s{WNs}
            s_lshl_b32 s43, s43, 2
            s_add_u32 s{S_T3}, s{S_T3}, s43
            s_add_u32 s{S_T3}, s{S_T3}, {FH}
            v_mov_b32 v3, s{S_NONCE}
            s_waitcnt vmcnt(0)
            s_mov_b64 exec, 1
            buffer_store_dword v3, off, {R_WS}, s{S_T3} sc1
            s_mov_b64 exec, -1''')
    def gemm2(self):
        A = self.A
        ACC, WF, HR = 88, 68, 20
        MT2, AH, CT = 48, 49, 50
        self.srd(20, 7, 2621440)
        A(f'''s_lshl_b32 s{MT2}, s{S_XCD}, 1
        s_lshr_b32 s{S_T0}, s{S_IDX}, 4
        s_add_u32 s{MT2}, s{MT2}, s{S_T0}
        s_bfe_u32 s{AH}, s{S_IDX}, 0x10003
        s_and_b32 s{CT}, s{S_IDX}, 7
        v_lshlrev_b32 v7, 4, v0
        s_lshl_b32 s{S_T0}, s{S_WAVE}, 12
        v_add_u32 v4, s{S_T0}, v7
        s_lshl_b32 s{S_T0}, s{S_WAVE}, 11
        s_add_u32 s{S_T0}, s{S_T0}, {WP}
        v_add_u32 v5, s{S_T0}, v7
        s_lshl_b32 s{S_T0}, s{S_WAVE}, 10
        s_add_u32 s{S_T0}, s{S_T0}, {WM}
        v_add_u32 v6, s{S_T0}, v7
        s_lshl_b32 s{S_T0}, s{S_WAVE}, 2
        v_mov_b32 v10, {CNT}
        v_add_u32 v10, s{S_T0}, v10
        s_lshl_b32 s{S_T0}, s{MT2}, 1
        s_add_u32 s{S_T0}, s{S_T0}, s{AH}
        s_lshl_b32 s{S_T1}, s{S_T0}, 2
        s_add_u32 s{S_T1}, s{S_T1}, s{S_WAVE}
        s_lshl_b32 s{S_T1}, s{S_T1}, 7
        s_add_u32 s{S_T1}, s{S_T1}, {FH}
        v_lshlrev_b32 v8, 2, v0
        v_add_u32 v8, s{S_T1}, v8
        s_mul_i32 s{S_T0}, s{S_T0}, {4*49152}
        s_mul_i32 s{S_T1}, s{S_WAVE}, {12*1024}
        s_add_u32 s{S_T0}, s{S_T0}, s{S_T1}
        s_add_u32 s52, s{S_T0}, {HH}
        s_add_u32 s53, s52, 49152
        s_add_u32 s54, s53, 49152
        s_add_u32 s55, s54, 49152''')
        self.gpoll('v8', 1, 0xff, 9, sleep=1)
        self.stamp(4)
        hf = self.o.get('hflag', 'sc1')
        def hload(s_):
            L = []
            for tt in range(4):
                L.append(f'buffer_load_dwordx4 {v(HR+16*(s_%3)+4*tt,4)}, v7, {R_WS}, s{52+tt} offen offset:{(s_%4)*1024} {hf}')
            if s_ % 4 == 3: L.append('v_add_u32 v7, 4096, v7')
            return L
        reg = {43: 'v5', 44: 'v6', 42: 'v4'}
        def wread(s_, t):
            i = s_ // 2; n = (s_ % 2)*5 + t
            b, off = self.m0list((1 + i) % 3)[n]
            return f'ds_read_b128 {v(WF+4*t,4)}, {reg[b]} offset:{off}'
        for s_ in range(3):
            for x in hload(s_): A(x)
        self.wait(C_PFULL, 1, reg='v10')
        q = []
        def issue(tag, txt): A(txt); q.append(tag)
        def need(tag):
            k = q.index(tag); A(f's_waitcnt lgkmcnt({len(q)-1-k})'); del q[:k+1]
        for t in range(5): issue((0, t), wread(0, t))
        for s_ in range(12):
            A(f's_waitcnt vmcnt({min(8, 4*(11-s_))})')
            nxt = s_ + 1; i = s_ // 2
            for t in range(5):
                need((s_, t))
                if s_ % 2 == 1 and t == 4 and i < 3: issue('a', self.arrive(C_PFREE + 4*i, 'v10'))
                for tt in range(4):
                    c = ACC + 20*tt + 4*t
                    A(f'v_mfma_f32_16x16x32_bf16 {v(c,4)}, {v(WF+4*t,4)}, {v(HR+16*(s_%3)+4*tt,4)}, {v(c,4) if s_ else 0}')
                if nxt < 12: issue((nxt, t), wread(nxt, t))
                if s_ % 2 == 0 and t == 2 and i < 5: issue('p', f'ds_read_b32 v11, v10 offset:{4*(C_PFULL+4*(i+1))}')
            if s_ + 3 < 12:
                for x in hload(s_ + 3): A(x)
            if s_ % 2 == 0 and i < 5:
                k = q.index('p'); A(f's_waitcnt lgkmcnt({len(q)-1-k})')
                sk = A.newlabel(self.L('Lsk'))
                A(f'v_readfirstlane_b32 s{S_T1}, v11\ns_cmp_eq_u32 s{S_T1}, 1\ns_cbranch_scc1 {sk}')
                self.wait(C_PFULL + 4*(i+1), 1, reg='v10')
                A(sk + ':')
        self.stamp(5)
        own = [(42, b*16384 + q*1024) for b in range(3) for q in range(4)] + [(43, b*8192) for b in range(3)]
        base_of = {42: lambda w: w*4096, 43: lambda w: WP + w*2048}
        done = self.L('redw');
        for w in range(4):
            nx = self.L(f'redw{w}')
            if w < 3: A(f's_cmp_lg_u32 s{S_WAVE}, {w}\ns_cbranch_scc1 {nx}')
            n = 0
            for d in range(1, 4):
                tt = (w + d) % 4
                for t in range(5):
                    b, off = own[n]; n += 1
                    A(f'ds_write_b128 {reg[b]}, {v(ACC+20*tt+4*t,4)} offset:{off}')
            A('s_waitcnt lgkmcnt(0)\n' + self.arrive(C_RED))
            if w:
                for r in range(20): A(f'v_mov_b32 v{ACC+r}, v{ACC+20*w+r}')
            if w < 3: A(f's_branch {done}\n{nx}:')
        A(done + ':')
        A(f'''s_lshl_b32 s{S_T0}, s{MT2}, 7
        s_add_u32 s{S_T0}, s{S_T0}, {F3}
        v_lshlrev_b32 v8, 2, v0
        v_add_u32 v8, s{S_T0}, v8''')
        self.gpoll('v8', 1, 0xffff, 9, sleep=1)
        A(f'''s_lshl_b32 s{S_T0}, s{AH}, 2
        s_add_u32 s{S_T0}, s{S_T0}, s{S_WAVE}
        s_lshl_b32 s{S_T0}, s{S_T0}, 8
        s_lshl_b32 s{S_T1}, s{MT2}, 4
        s_add_u32 s{S_T0}, s{S_T0}, s{S_T1}
        s_mul_i32 s{S_T0}, s{S_T0}, 1280
        s_mul_i32 s{S_T1}, s{CT}, 160
        s_add_u32 s56, s{S_T0}, s{S_T1}
        s_add_u32 s57, s56, {XA}
        v_and_b32 v8, 15, v0
        v_mul_u32_u24 v8, 1280, v8
        v_lshrrev_b32 v9, 4, v0
        v_lshl_add_u32 v11, v9, 3, v8
        v_lshl_add_u32 v8, v9, 4, v8
        buffer_load_dwordx4 v[12:15], v8, {R_WS}, s57 offen sc1
        buffer_load_dwordx4 v[16:19], v8, {R_WS}, s57 offen offset:64 sc1
        buffer_load_dwordx2 v[68:69], v11, {R_WS}, s57 offen offset:128 sc1''')
        for d in range(1, 4):
            A(f'''s_sub_u32 s{S_T0}, s{S_WAVE}, {d}
            s_and_b32 s{S_T0}, s{S_T0}, 3
            s_lshl_b32 s{S_T1}, s{S_T0}, 12
            v_lshl_add_u32 v{70+2*d}, v0, 4, s{S_T1}
            s_lshl_b32 s{S_T1}, s{S_T0}, 11
            s_add_u32 s{S_T1}, s{S_T1}, {WP}
            v_lshl_add_u32 v{71+2*d}, v0, 4, s{S_T1}''')
        self.wait(C_RED, 4)
        dst = lambda n: (20 + 4*n) if n < 12 else (ACC + 20 + 4*(n-12))
        for n in range(15):
            d = n // 5 + 1; b, off = own[n]
            A(f'ds_read_b128 {v(dst(n),4)}, v{70+2*d+(0 if b == 42 else 1)} offset:{off}')
        for n in range(15):
            A(f's_waitcnt lgkmcnt({14-n})')
            t = n % 5
            for p in range(2): A(f'v_pk_add_f32 {v(ACC+4*t+2*p,2)}, {v(ACC+4*t+2*p,2)}, {v(dst(n)+2*p,2)}')
        self.stamp(6)
        A('s_waitcnt vmcnt(0)')
        src = [12, 13, 14, 15, 16, 17, 18, 19, 68, 69]
        for p in range(10):
            a0 = ACC + 2*p
            A(f'''v_cvt_pk_bf16_f32 v20, v{a0}, v{a0+1}
            v_lshlrev_b32 v21, 16, v20
            v_and_b32 v20, 0xffff0000, v20
            v_lshlrev_b32 v22, 16, v{src[p]}
            v_and_b32 v23, 0xffff0000, v{src[p]}
            v_add_f32 v21, v21, v22
            v_add_f32 v20, v20, v23
            v_cvt_pk_bf16_f32 v{24+p}, v21, v20''')
        A(f'''buffer_store_dwordx4 v[24:27], v8, {R_A}, s56 offen
        buffer_store_dwordx4 v[28:31], v8, {R_A}, s56 offen offset:64
        buffer_store_dwordx2 v[32:33], v11, {R_A}, s56 offen offset:128''')
    C40, C16, TW, R8, XR = 14, 68, 74, 98, 4
    def dft_consts(self, scale=None):
        A = self.A; C40, C16, TW = self.C40, self.C16, self.TW
        n, g4, a, c, s_ = 106, 107, 108, 112, 116
        kq, st = 120, 121
        A(f'''v_and_b32 v{n}, 15, v0
        v_cvt_f32_u32 v{n}, v{n}
        v_lshrrev_b32 v{g4}, 4, v0
        v_lshlrev_b32 v{g4}, 2, v{g4}
        v_cvt_f32_u32 v{g4}, v{g4}''')
        def block(dst):
            for r in range(4): A(f'v_cos_f32 v{c+r}, v{a+r}')
            for r in range(4): A(f'v_sin_f32 v{s_+r}, v{a+r}')
            for p in range(2):
                A(f'v_cvt_pk_bf16_f32 v{dst+2+p}, v{c+2*p}, v{c+2*p+1}')
            for p in range(2):
                A(f'v_cvt_pk_bf16_f32 v{dst+p}, -v{s_+2*p}, -v{s_+2*p+1}')
                A(f'v_cvt_pk_bf16_f32 v{dst+4+p}, v{s_+2*p}, v{s_+2*p+1}')
        def angles(base_mul):
            A(f'v_add_f32 v{a}, {fl(float(base_mul))}, v{g4}\nv_mul_f32 v{a}, v{a}, v{st}')
            for r in range(1, 4): A(f'v_add_f32 v{a+r}, v{a+r-1}, v{st}')
        A(f'v_mul_f32 v{st}, {fl(1/16)}, v{n}')
        angles(0); block(C16)
        for t in range(3):
            A(f'v_add_f32 v{kq}, {fl(16.0*t)}, v{n}\nv_mul_f32 v{st}, {fl(1/40)}, v{kq}')
            for sk in range(3):
                d = C40 + 6*(3*t + sk)
                if sk == 2:
                    for r in range(6): A(f'v_mov_b32 v{d+r}, 0')
                    A('s_mov_b32 exec_hi, 0')
                angles(16*sk); block(d)
                if sk == 2: A('s_mov_b32 exec_hi, -1')
            A(f'v_mul_f32 v{st}, {fl(1/640)}, v{kq}')
            angles(0)
            for r in range(4): A(f'v_cos_f32 v{TW+4*t+r}, v{a+r}')
            for r in range(4): A(f'v_sin_f32 v{TW+12+4*t+r}, v{a+r}')
        if scale is not None:
            for r in range(24): A(f'v_mul_f32 v{TW+r}, {fl(scale)}, v{TW+r}')
    def dft_core(self, SW):
        A = self.A; C40, C16, TW = self.C40, self.C16, self.TW
        DA, U, TMP = 140, 106, 130
        A(f'''s_mul_i32 s{S_T0}, s{SW}, 2560
        s_add_u32 s{S_T0}, s{S_T0}, {PL}
        v_lshl_add_u32 v152, v0, 3, s{S_T0}
        v_and_b32 v153, 31, v0
        v_lshl_add_u32 v153, v153, 3, s{S_T0}''')
        return DA, U, TMP
    def dft_run(self, DA, U, TMP):
        A = self.A; C40, C16, TW = self.C40, self.C16, self.TW
        for sk in range(3):
            for c in range(2):
                ad = 'v152' if sk < 2 else 'v153'
                A(f'ds_read_b64_tr_b16 {v(DA+4*sk+2*c,2)}, {ad} offset:{512*sk + 1280*c}')
        for sk in range(3):
            A(f's_waitcnt lgkmcnt({4-2*sk})')
            for t in range(3):
                b = C40 + 6*(3*t + sk)
                A(f'v_mfma_f32_16x16x32_bf16 {v(U+8*t,4)}, {v(DA+4*sk,4)}, {v(b+2,4)}, {v(U+8*t,4) if sk else 0}')
                A(f'v_mfma_f32_16x16x32_bf16 {v(U+8*t+4,4)}, {v(DA+4*sk,4)}, {v(b,4)}, {v(U+8*t+4,4) if sk else 0}')
        for t in range(3):
            re, im = U + 8*t, U + 8*t + 4
            for p in range(2):
                c = v(TW+4*t+2*p, 2); s_ = v(TW+12+4*t+2*p, 2)
                A(f'v_pk_mul_f32 {v(TMP+4*p,2)}, {v(re+2*p,2)}, {c}')
                A(f'v_pk_mul_f32 {v(TMP+4*p+2,2)}, {v(im+2*p,2)}, {c}')
                A(f'v_pk_fma_f32 {v(TMP+4*p,2)}, {v(im+2*p,2)}, {s_}, {v(TMP+4*p,2)}')
                A(f'v_pk_fma_f32 {v(TMP+4*p+2,2)}, {v(re+2*p,2)}, {s_}, {v(TMP+4*p+2,2)} neg_lo:[1,0,0] neg_hi:[1,0,0]')
            for p in range(2):
                A(f'v_cvt_pk_bf16_f32 v{DA+4*t+p}, v{TMP+4*p}, v{TMP+4*p+1}')
                A(f'v_cvt_pk_bf16_f32 v{DA+4*t+2+p}, v{TMP+4*p+2}, v{TMP+4*p+3}')
        for t in range(3):
            A(f'v_mfma_f32_16x16x32_bf16 {v(U+8*t,4)}, {v(DA+4*t,4)}, {v(C16+2,4)}, 0')
            A(f'v_mfma_f32_16x16x32_bf16 {v(U+8*t+4,4)}, {v(DA+4*t,4)}, {v(C16,4)}, 0')
    def role_S(self):
        A = self.A; sec = self.sec; SW = 41; XR = self.XR
        A(f's_sub_u32 s{SW}, s{S_WAVE}, 8')
        A(f'''v_lshrrev_b32 v160, 5, v0
        v_lshlrev_b32 v160, 10, v160
        s_lshl_b32 s{S_T0}, s{SW}, 8
        s_add_u32 s{S_T0}, s{S_T0}, s{S_J}
        v_add_u32 v160, s{S_T0}, v160
        v_mul_u32_u24 v160, 1280, v160
        v_and_b32 v162, 31, v0
        v_lshl_add_u32 v161, v162, 3, v160
        v_lshl_add_u32 v160, v162, 4, v160''')
        doc6 = 'aux' in sec
        if doc6:
            for n in range(5):
                A(f'''v_add_u32 v106, {64*n}, v0
                v_mul_u32_u24 v107, 6554, v106
                v_lshrrev_b32 v107, 16, v107
                v_mul_u32_u24 v108, 10, v107
                v_sub_u32 v108, v106, v108
                v_mul_u32_u24 v107, 1280, v107
                v_lshl_add_u32 v{110+n}, v108, 4, v107''')
        A('s_waitcnt lgkmcnt(0)')
        self.srd(4, 0, 2621440); self.srd(16, 9, 0x10000000)
        xf = self.o.get('sxflag', '')
        if 'p1' in sec or 'p3' in sec:
            A(f'''buffer_load_dwordx4 {v(XR,4)}, v160, {R_X}, 0 offen {xf}
            buffer_load_dwordx4 {v(XR+4,4)}, v160, {R_X}, 0 offen offset:512 {xf}
            buffer_load_dwordx2 {v(XR+8,2)}, v161, {R_X}, 0 offen offset:1024 {xf}''')
        if doc6:
            self.srd(24, 6, 1966080)
            sk = self.L('c6skip0')
            A(f'''s_cmp_ge_u32 s{S_IDX}, 24
            s_cbranch_scc1 {sk}
            s_cmp_ge_u32 s{SW}, 2
            s_cbranch_scc1 {sk}
            s_lshl_b32 s42, s{S_IDX}, 1
            s_add_u32 s42, s42, s{SW}
            s_mul_i32 s{S_T0}, s42, {32*1280}
            s_mul_i32 s{S_T1}, s{S_XCD}, 160
            s_add_u32 s{S_T0}, s{S_T0}, s{S_T1}
            s_mul_i32 s{S_T1}, s{SW}, 5120
            s_add_u32 s{S_T1}, s{S_T1}, {W2S}''')
            for n in range(5):
                A(f's_add_u32 m0, s{S_T1}, {1024*n}\nbuffer_load_dwordx4 v{110+n}, {R_B}, s{S_T0} offen {self.o.get("w2flag","")} lds')
            A(sk + ':')
        A('s_barrier')
        if 'p1' in sec: self.phase1(SW)
        if 'aux' in sec: self.aux_a(SW)
        if 'p2' in sec: self.phase2_pre(SW)
        if 'aux' in sec: self.aux_b(SW)
        if 'p2' in sec: self.phase2(SW)
        if 'p3' in sec: self.phase3(SW)
    def phase1(self, SW):
        A = self.A; XR, R8 = self.XR, self.R8
        self.dft_consts()
        A(f'''v_and_b32 v106, 7, v0
        v_cvt_f32_u32 v107, v106
        v_and_b32 v108, 1, v0
        v_bfe_u32 v109, v0, 4, 1
        v_xor_b32 v108, v108, v109
        v_cvt_f32_u32 v108, v108
        v_mov_b32 v110, {fl(-0.125)}
        v_fmac_f32 v110, {fl(0.25)}, v108
        v_cvt_f32_u32 v109, v109
        v_mov_b32 v111, -1.0
        v_fmac_f32 v111, 2.0, v109
        v_cvt_f32_u32 v112, s{S_J}
        v_mul_f32 v112, {fl(-1/2048)}, v112
        v_fmac_f32 v110, v112, v107
        v_mul_f32 v107, {fl(-0.125)}, v107
        v_bfe_u32 v113, v0, 3, 1
        v_lshrrev_b32 v114, 5, v0
        v_cmp_eq_u32 vcc, v113, v114
        v_mov_b32 v113, {fl(math.sqrt(0.5))}
        v_cndmask_b32 v113, 0, v113, vcc
        v_mul_f32 v111, v111, v113''')
        for w in range(4):
            A(f'''v_cos_f32 v114, v110
            v_sin_f32 v115, v110
            v_add_f32 v110, v110, v107
            v_mul_f32 v116, v114, v113
            v_mul_f32 v117, v115, v111
            v_mul_f32 v118, v115, v113
            v_mul_f32 v119, v114, v111
            v_cvt_pk_bf16_f32 v{R8+w}, v116, v117
            v_cvt_pk_bf16_f32 v{R8+4+w}, v118, -v119''')
        DA, U, TMP = self.dft_core(SW)
        A(f'''v_lshrrev_b32 v154, 5, v0
        v_mul_u32_u24 v154, 1280, v154
        v_add_u32 v154, s{S_T0}, v154
        v_lshl_add_u32 v155, v162, 3, v154
        v_lshl_add_u32 v154, v162, 4, v154
        v_and_b32 v106, 15, v0
        v_lshrrev_b32 v107, 4, v0
        v_mul_u32_u24 v156, 160, v106
        v_lshl_add_u32 v156, v107, 4, v156
        s_add_u32 s{S_T0}, s{S_T0}, {ZB - PL}
        v_add_u32 v156, s{S_T0}, v156
        v_lshrrev_b32 v108, 5, v0
        v_lshl_add_u32 v108, v108, 4, v106
        s_lshl_b32 s{S_T1}, s{SW}, 5
        v_add_u32 v108, s{S_T1}, v108
        v_sub_u32 v109, 640, v108
        v_and_b32 v107, 1, v107
        v_cmp_eq_u32 vcc, 1, v107
        v_cndmask_b32 v108, v108, v109, vcc
        v_mov_b32 v109, 512
        v_mov_b32 v110, -512
        v_cndmask_b32 v109, v109, v110, vcc
        v_lshlrev_b32 v110, 2, v108
        v_add_u32 v110, {ZB}, v110
        v_add_u32 v158, v110, v109
        v_add_u32 v159, v158, v109
        v_cmp_eq_u32 vcc, 640, v108
        v_mov_b32 v109, {ZB}
        v_cndmask_b32 v157, v110, v109, vcc
        v_and_b32 v106, 7, v0
        v_mul_u32_u24 v106, 21, v106
        v_bfe_u32 v107, v0, 3, 1
        v_add_u32 v106, v106, v107
        v_lshlrev_b32 v106, 14, v106
        v_lshrrev_b32 v107, 4, v0
        v_lshl_add_u32 v163, v107, 4, v106
        s_lshl_b32 s43, s{S_J}, 6
        s_lshl_b32 s{S_T1}, s{SW}, 15
        s_add_u32 s43, s43, s{S_T1}
        s_add_u32 s44, s43, {4 << 15}
        s_add_u32 s45, s43, {8 << 15}
        v_mov_b32 v126, 0
        v_mov_b32 v127, 0
        v_mov_b32 v128, 0x3f803f80''')
        nd = 5 if 'aux' in self.sec else 0
        self.stamp(1)
        A('s_waitcnt vmcnt(0)')
        self.stamp(2)
        for r in range(10):
            A(f'v_dot2c_f32_bf16 v126, v{XR+r}, v128\nv_dot2c_f32_bf16 v127, v{XR+r}, v{XR+r}')
        for r in range(10):
            A(f'v_lshlrev_b32 v{106+2*r}, 16, v{XR+r}\nv_and_b32 v{107+2*r}, 0xffff0000, v{XR+r}')
        for sh in (8, 4, 2, 1):
            A(f'v_add_f32_dpp v126, v126, v126 row_ror:{sh} row_mask:0xf bank_mask:0xf')
            A(f'v_add_f32_dpp v127, v127, v127 row_ror:{sh} row_mask:0xf bank_mask:0xf')
        A(f'''v_mov_b32 v128, v126
        v_mov_b32 v129, v127
        v_permlane16_swap_b32 v126, v128
        v_permlane16_swap_b32 v127, v129
        v_add_f32 v126, v126, v128
        v_add_f32 v127, v127, v129
        v_mul_f32 v126, {fl(1/640)}, v126
        v_mul_f32 v127, {fl(1/640)}, v127
        v_fma_f32 v127, -v126, v126, v127
        v_max_f32 v127, 0, v127
        v_cvt_pk_bf16_f32 v128, v126, v127
        v_lshlrev_b32 v164, 16, v128
        v_and_b32 v127, 0xffff0000, v128
        v_add_f32 v127, {fl(1e-5)}, v127
        v_cvt_pk_bf16_f32 v127, v127, v127
        v_and_b32 v127, 0xffff0000, v127
        v_sqrt_f32 v127, v127
        v_cvt_pk_bf16_f32 v127, v127, v127
        v_and_b32 v165, 0xffff0000, v127
        v_rcp_f32 v126, v165
        v_mul_f32 v128, v164, v126
        v_mov_b32 v127, v126
        v_mov_b32 v129, v128''')
        for r in range(10):
            A(f'v_pk_fma_f32 {v(106+2*r,2)}, {v(106+2*r,2)}, v[126:127], v[128:129] neg_lo:[0,0,1] neg_hi:[0,0,1]')
        for r in range(10):
            A(f'v_cvt_pk_bf16_f32 v{130+r}, v{106+2*r}, v{107+2*r}')
        A(f'''ds_write_b128 v154, v[130:133]
        ds_write_b128 v154, v[134:137] offset:512
        ds_write_b64 v155, v[138:139] offset:1024
        s_waitcnt lgkmcnt(0)''')
        self.dft_run(DA, U, TMP)
        A(f'''s_lshr_b32 s{S_T0}, s{S_J}, 4
        s_lshl_b32 s{S_T0}, s{S_T0}, 7
        s_and_b32 s{S_T1}, s{S_J}, 15
        s_add_u32 s{S_T0}, s{S_T0}, s{S_T1}
        s_lshl_b32 s{S_T1}, s{SW}, 4
        s_add_u32 s{S_T0}, s{S_T0}, s{S_T1}
        s_lshl_b32 s{S_T0}, s{S_T0}, 3
        s_add_u32 s{S_T0}, s{S_T0}, {ST}
        v_lshlrev_b32 v3, 4, v0
        s_mov_b32 exec_lo, 1
        s_mov_b32 exec_hi, 1
        buffer_store_dwordx2 v[164:165], v3, {R_WS}, s{S_T0} offen sc1
        s_mov_b64 exec, -1''')
        for t in range(3):
            for i in range(4): A(f'v_cvt_pk_bf16_f32 v{130+4*t+i}, v{U+8*t+i}, v{U+8*t+4+i}')
            if t == 2: A('s_mov_b32 exec_hi, 0')
            A(f'ds_write_b128 v156, {v(130+4*t,4)} offset:{64*t}')
            if t == 2: A('s_mov_b32 exec_hi, -1')
        self.get_nonce()
        self.sync(C_P1Z)
        for u in range(3):
            A(f'''ds_read2st64_b32 {v(106+4*u,2)}, v{157+u} offset0:0 offset1:10
            ds_read2st64_b32 {v(108+4*u,2)}, v{157+u} offset0:20 offset1:30''')
        sk = self.L('p1u')
        for u in range(3):
            A(f'''s_waitcnt lgkmcnt({4-2*u})
            v_mfma_f32_16x16x32_bf16 {v(118+8*u,4)}, {v(106+4*u,4)}, {v(R8,4)}, 0
            v_mfma_f32_16x16x32_bf16 {v(122+8*u,4)}, {v(106+4*u,4)}, {v(R8+4,4)}, 0''')
        for u in range(3):
            for i in range(4): A(f'v_cvt_pk_bf16_f32 v{142+4*u+i}, v{118+8*u+i}, v{122+8*u+i}')
            if u == 2:
                A(f'''s_cmp_eq_u32 s{SW}, 3
                s_cbranch_scc1 {sk}
                s_cmp_eq_u32 s{SW}, 2
                s_cselect_b32 exec_lo, 0x00ff00ff, -1
                s_cselect_b32 exec_hi, 0x00ff00ff, -1''')
            A(f'buffer_store_dwordx4 {v(142+4*u,4)}, v163, {R_WS}, s{43+u} offen sc1')
        A(f's_mov_b64 exec, -1\n{sk}:')
        A(f's_lshl_b32 s46, s{S_J}, 2\ns_add_u32 s46, s46, {F1}')
        self.publish_group(C_P1PUB, 's46')
        self.stamp(3)
    def aux_a(self, SW):
        A = self.A
        self.srd(8, 4, 1966080); self.srd(12, 5, 1966080)
        A(f'''s_mul_i32 s{S_T0}, s{S_MT}, 40
        s_mul_i32 s{S_T1}, s{SW}, 10
        s_add_u32 s{S_T0}, s{S_T0}, s{S_T1}
        s_mul_i32 s{S_T0}, s{S_T0}, 3072
        s_mul_i32 s{S_T1}, s{S_NT}, 192
        s_add_u32 s{S_T0}, s{S_T0}, s{S_T1}
        v_lshrrev_b32 v106, 5, v0
        v_mul_u32_u24 v106, 3072, v106
        v_lshl_add_u32 v106, v162, 3, v106''')
        for i in range(5):
            A(f'buffer_load_dwordx2 {v(134+2*i,2)}, v106, {R_W1}, s{S_T0} offen')
            A(f'buffer_load_dwordx2 {v(144+2*i,2)}, v106, {R_W3}, s{S_T0} offen')
            if i < 4: A(f's_add_u32 s{S_T0}, s{S_T0}, 6144')
    def aux_b(self, SW):
        A = self.A
        younger = 0
        A(f'''v_mov_b32 v106, 0x00003f80
        v_mov_b32 v107, 0x3f800000''')
        for r in range(8): A(f'v_mov_b32 v{108+r}, 0')
        A('s_waitcnt vmcnt(0)')
        for m in range(2):
            for i in range(5):
                for d in range(2):
                    A(f'v_dot2c_f32_bf16 v{108+4*m+2*d}, v{134+10*m+2*i+d}, v106\nv_dot2c_f32_bf16 v{109+4*m+2*d}, v{134+10*m+2*i+d}, v107')
        A(f'''v_lshrrev_b32 v116, 5, v0
        s_lshl_b32 s{S_T0}, s{SW}, 1
        v_add_u32 v116, s{S_T0}, v116
        v_mul_u32_u24 v116, 768, v116
        v_lshl_add_u32 v116, v162, 4, v116
        v_add_u32 v116, {C0X}, v116
        s_mov_b32 exec_lo, 0x00ffffff
        s_mov_b32 exec_hi, 0x00ffffff
        ds_write_b128 v116, v[108:111]
        ds_write_b128 v116, v[112:115] offset:384
        s_mov_b64 exec, -1''')
        sk = self.L('c6skip1')
        A(f'''s_cmp_ge_u32 s{S_IDX}, 24
        s_cbranch_scc1 {sk}
        s_cmp_ge_u32 s{SW}, 2
        s_cbranch_scc1 {sk}
        v_lshrrev_b32 v116, 5, v0
        v_bfe_u32 v117, v0, 2, 3
        v_lshl_add_u32 v116, v116, 4, v117
        v_mul_u32_u24 v116, 160, v116
        s_mul_i32 s{S_T1}, s{SW}, 5120
        s_add_u32 s{S_T1}, s{S_T1}, {W2S}
        v_add_u32 v116, s{S_T1}, v116
        v_and_b32 v117, 3, v0
        v_lshl_add_u32 v118, v117, 3, v116
        v_lshl_add_u32 v117, v117, 4, v116''')
        for t in range(5):
            for rd in range(2):
                if t < 4: A(f'ds_read_b64_tr_b16 {v(134+4*t+2*rd,2)}, v117 offset:{64*(t>>1) + 8*(t&1) + 1280*rd}')
                else: A(f'ds_read_b64_tr_b16 {v(134+4*t+2*rd,2)}, v118 offset:{128 + 1280*rd}')
        A(f'''s_mul_i32 s{S_T0}, s{S_XCD}, 48
        s_add_u32 s{S_T0}, s{S_T0}, s42
        s_mul_i32 s{S_T0}, s{S_T0}, 5120
        s_add_u32 s{S_T0}, s{S_T0}, {W2F}
        s_add_u32 s{S_T1}, s{S_T0}, 4096
        v_lshlrev_b32 v116, 4, v0''')
        for t in range(5):
            A(f's_waitcnt lgkmcnt({8-2*t})')
            A(f'buffer_store_dwordx4 {v(134+4*t,4)}, v116, {R_WS}, s{S_T0 if t < 4 else S_T1} offen offset:{(t%4)*1024} sc1')
        A(sk + ':')
        self.sync(C_C0X)
        sk = self.L('c0skip')
        A(f'''s_cmp_eq_u32 s{SW}, 3
        s_cbranch_scc1 {sk}
        s_lshl_b32 s{S_T0}, s{SW}, 8
        v_lshl_add_u32 v116, v0, 2, s{S_T0}
        v_add_u32 v117, {C0X}, v116''')
        for p in range(4): A(f'ds_read2st64_b32 {v(108+2*p,2)}, v117 offset0:{6*p} offset1:{6*p+3}')
        A(f'''s_lshl_b32 s{S_T0}, s{S_NT}, 4
        s_add_u32 s{S_T0}, s{S_T0}, s{S_MT}
        s_mul_i32 s{S_T0}, s{S_T0}, 768
        s_add_u32 s{S_T0}, s{S_T0}, {CS}
        s_waitcnt lgkmcnt(0)''')
        for st in (4, 2, 1):
            for p in range(st): A(f'v_add_f32 v{108+p}, v{108+p}, v{108+p+st}')
        A(f'buffer_store_dword v108, v116, {R_WS}, s{S_T0} offen sc1\n{sk}:')
        A(f's_lshl_b32 s46, s2, 2\ns_add_u32 s46, s46, {FA}')
        self.publish_group(C_AUXPUB, 's46')
        self.stamp(4)
    GA, FF, WR, DI, DD, PP = 14, 46, 54, 86, 102, 134
    def phase2_pre(self, SW):
        A = self.A; GA, FF, WR, DD = self.GA, self.FF, self.WR, self.DD
        sk = self.L('p2pre')
        A(f's_cmp_ge_u32 s{S_IDX}, 21\ns_cbranch_scc1 {sk}')
        self.srd(20, 1, 1314816); self.srd(24, 2, 1314816)
        for r in range(32): A(f'v_mov_b32 v{WR+r}, 0')
        A(f'''v_lshrrev_b32 v{DD}, 4, v0
        v_lshlrev_b32 v{DD}, 9, v{DD}
        s_lshl_b32 s{S_T0}, s{SW}, 5
        s_add_u32 s{S_T0}, s{S_T0}, s{S_XCD}
        v_add_u32 v{DD}, s{S_T0}, v{DD}
        v_mul_u32_u24 v{DD+1}, 642, v{DD}
        v_and_b32 v{DD+2}, 15, v0
        s_lshl_b32 s{S_T1}, s{S_IDX}, 5
        v_lshl_add_u32 v{DD+2}, v{DD+2}, 1, s{S_T1}
        v_add_u32 v{DD+1}, v{DD+1}, v{DD+2}''')
        wf = self.o.get('fflag', '')
        for i in range(4):
            for r in range(4):
                A(f's_mov_b32 s{S_T0}, {i*5136 + r*82176}')
                A(f'buffer_load_short_d16_hi v{WR+4*i+r}, v{DD+1}, {R_A}, s{S_T0} offen {wf}')
                A(f'buffer_load_short_d16_hi v{WR+16+4*i+r}, v{DD+1}, {R_B}, s{S_T0} offen {wf}')
        ns = self.L('p2nosym')
        A(f'''s_cmp_eq_u32 s{S_IDX}, 0
        s_cselect_b32 s{S_T0}, 20, s{S_IDX}
        s_cmp_lg_u32 s{S_T0}, 20
        s_cbranch_scc1 {ns}
        s_mov_b32 exec_lo, 0x00010001
        s_mov_b32 exec_hi, 0x00010001
        v_mov_b32 v{GA+33}, v{DD}''')
        for i in range(4):
            for r in range(4):
                q = 4*i + r
                A(f'''v_sub_u32 v{GA+32}, {2048 - 8*i - 128*r}, v{GA+33}
                v_and_b32 v{GA+32}, 2047, v{GA+32}
                v_mul_u32_u24 v{GA+32}, 642, v{GA+32}
                v_mov_b32 v{GA+q}, 0
                v_mov_b32 v{GA+16+q}, 0
                buffer_load_short_d16_hi v{GA+q}, v{GA+32}, {R_A}, s{S_T1} offen
                buffer_load_short_d16_hi v{GA+16+q}, v{GA+32}, {R_B}, s{S_T1} offen''')
        A('s_waitcnt vmcnt(0)')
        for q in range(16):
            A(f'''v_add_f32 v{WR+q}, v{WR+q}, v{GA+q}
            v_sub_f32 v{WR+16+q}, v{WR+16+q}, v{GA+16+q}
            v_mul_f32 v{WR+q}, 0.5, v{WR+q}
            v_mul_f32 v{WR+16+q}, 0.5, v{WR+16+q}''')
        A(f's_mov_b64 exec, -1\n{ns}:')
        a, c, s_ = DD + 4, DD + 8, DD + 12
        A(f'''v_and_b32 v{DD}, 15, v0
        v_cvt_f32_u32 v{DD}, v{DD}
        v_mul_f32 v{DD}, {fl(1/256)}, v{DD}
        v_lshrrev_b32 v{DD+1}, 4, v0
        v_lshlrev_b32 v{DD+1}, 6, v{DD+1}
        v_cvt_f32_u32 v{DD+1}, v{DD+1}
        v_mul_f32 v{DD+2}, {fl(16.0)}, v{DD}
        s_lshl_b32 s{S_T0}, s{SW}, 2
        v_cvt_f32_u32 v{DD+3}, s{S_T0}
        v_add_f32 v{DD+3}, v{DD+3}, v{DD+1}''')
        for t in range(5):
            dst = FF if t == 4 else GA + 8*t
            if t == 4: A(f'v_mul_f32 v{a}, v{DD+1}, v{DD}')
            else: A(f'v_add_f32 v{a}, {fl(float(t))}, v{DD+3}\nv_mul_f32 v{a}, v{a}, v{DD}')
            for r in range(1, 4): A(f'v_add_f32 v{a+r}, v{a+r-1}, v{DD+2}')
            for r in range(4): A(f'v_cos_f32 v{c+r}, v{a+r}')
            for r in range(4): A(f'v_sin_f32 v{s_+r}, v{a+r}')
            for r in range(4):
                A(f'v_cvt_pk_bf16_f32 v{dst+r}, v{c+r}, v{s_+r}\nv_cvt_pk_bf16_f32 v{dst+4+r}, -v{s_+r}, v{c+r}')
        A(sk + ':')
    def phase2(self, SW):
        A = self.A; GA, FF, WR, DI, DD, PP = self.GA, self.FF, self.WR, self.DI, self.DD, self.PP
        sk = self.L('p2skip')
        A(f's_cmp_ge_u32 s{S_IDX}, 21\ns_cbranch_scc1 {sk}')
        A(f'''v_lshrrev_b32 v150, 4, v0
        v_lshlrev_b32 v150, 12, v150
        s_lshl_b32 s{S_T0}, s{SW}, 8
        v_add_u32 v150, s{S_T0}, v150
        v_and_b32 v151, 15, v0
        v_lshl_add_u32 v152, v151, 4, v150
        v_lshl_add_u32 v150, v151, 2, v150
        v_add_u32 v151, {E1}, v152
        s_lshl_b32 s{S_T0}, s{SW}, 12
        s_add_u32 s{S_T0}, s{S_T0}, {E1}
        v_lshl_add_u32 v153, v0, 4, s{S_T0}
        s_mul_i32 s43, s{S_XCD}, 21
        s_add_u32 s43, s43, s{S_IDX}
        s_lshl_b32 s43, s43, 14
        s_add_u32 s44, s43, {VV}''')
        if self.fused:
            g = self.L('p2go')
            A(f's_cmp_lg_u32 s{SW}, 0\ns_cbranch_scc1 {g}\nv_lshlrev_b32 v154, 4, v0\nv_add_u32 v154, {F1}, v154')
            self.gpoll('v154', 4, None, DI)
            A(g + ':')
        self.sync(C_P2GO, sleep=1)
        self.stamp(5)
        for t in range(4):
            for r in range(4): A(f'buffer_load_dword v{DI+4*t+r}, v150, {R_WS}, s43 offen offset:{r*1024 + t*64} sc1')
        def mm(cst):
            for t in range(4):
                c = cst(t)
                A(f'v_mfma_f32_16x16x32_bf16 {v(DD+8*t,4)}, {v(c,4)}, {v(DI+4*t,4)}, 0')
                A(f'v_mfma_f32_16x16x32_bf16 {v(DD+8*t+4,4)}, {v(c+4,4)}, {v(DI+4*t,4)}, 0')
        def pack():
            for i in range(4):
                for t in range(4): A(f'v_cvt_pk_bf16_f32 v{PP+4*i+t}, v{DD+8*t+i}, v{DD+8*t+4+i}')
        def xchg(off, word):
            for i in range(4):
                for t in range(4): A(f'v_cvt_pk_bf16_f32 v{PP+4*i+t}, v{DD+8*t+i}, v{DD+8*t+4+i}')
                A(f'ds_write_b128 v151, {v(PP+4*i,4)} offset:{off + 1024*i}')
            self.sync(word)
            for i in range(4): A(f'ds_read_b128 {v(DI+4*i,4)}, v153 offset:{off + 1024*i}')
            A('s_waitcnt lgkmcnt(0)')
        A('s_waitcnt vmcnt(0)')
        mm(lambda t: GA + 8*t)
        xchg(0, C_P2X1)
        mm(lambda t: FF)
        for i in range(4):
            for p in range(2):
                br, bi = v(DD+8*i+2*p, 2), v(DD+8*i+4+2*p, 2); wr, wi = v(WR+4*i+2*p, 2), v(WR+16+4*i+2*p, 2)
                A(f'''v_pk_mul_f32 {v(PP,2)}, {bi}, {wi}
                v_pk_mul_f32 {v(PP+2,2)}, {bi}, {wr}
                v_pk_fma_f32 {v(PP,2)}, {br}, {wr}, {v(PP,2)} neg_lo:[0,0,1] neg_hi:[0,0,1]
                v_pk_fma_f32 {v(PP+2,2)}, {br}, {wi}, {v(PP+2,2)}
                v_cvt_pk_bf16_f32 v{DI+4*i+2*p}, v{PP}, -v{PP+2}
                v_cvt_pk_bf16_f32 v{DI+4*i+2*p+1}, v{PP+1}, -v{PP+3}''')
        mm(lambda t: GA + 8*t)
        xchg(E2 - E1, C_P2X2)
        mm(lambda t: FF)
        for r in range(4):
            for i in range(4): A(f'v_cvt_pk_bf16_f32 v{PP+4*r+i}, v{DD+8*i+r}, v{DD+8*i+4+r}')
            A(f'buffer_store_dwordx4 {v(PP+4*r,4)}, v152, {R_WS}, s44 offen offset:{1024*r} sc1')
        A(f's_lshl_b32 s46, s2, 2\ns_add_u32 s46, s46, {F2}')
        self.publish_group(C_P2PUB, 's46')
        A(sk + ':')
    def phase3(self, SW):
        A = self.A; XR, R8 = self.XR, self.R8
        self.dft_consts(scale=1.0/(2048*640))
        A(f'''v_bfe_u32 v106, v0, 2, 2
        v_lshlrev_b32 v106, 8, v106
        v_add_u32 v106, s{S_J}, v106
        v_cvt_f32_u32 v106, v106
        v_bfe_u32 v107, v0, 1, 1
        v_lshrrev_b32 v108, 5, v0
        v_cmp_eq_u32 vcc, v107, v108
        v_mov_b32 v109, {fl(math.sqrt(2.0))}
        v_cndmask_b32 v109, 0, v109, vcc
        v_cvt_f32_u32 v107, v107
        v_mov_b32 v110, -1.0
        v_fmac_f32 v110, 2.0, v107
        v_mul_f32 v106, v106, v110
        v_mul_f32 v106, {fl(1/2048)}, v106
        v_bfe_u32 v111, v0, 4, 1
        v_lshlrev_b32 v111, 2, v111
        v_cvt_f32_u32 v111, v111
        v_mul_f32 v111, v111, v106
        v_mul_f32 v110, v110, v109
        v_and_b32 v112, 1, v0
        v_cmp_eq_u32 vcc, 1, v112''')
        for r in range(4):
            A(f'''v_add_f32 v113, {fl(-0.125 if r % 2 == 0 else 0.125)}, v111
            v_cos_f32 v114, v113
            v_sin_f32 v115, v113
            v_add_f32 v111, v111, v106
            v_cndmask_b32 v116, v114, v115, vcc
            v_sub_f32 v114, 0, v114
            v_cndmask_b32 v117, v115, v114, vcc
            v_mul_f32 v116, v116, v109
            v_mul_f32 v117, v117, v110
            v_cvt_pk_bf16_f32 v{R8+r}, v116, v117''')
        DA, U, TMP = self.dft_core(SW)
        A(f'''v_and_b32 v106, 15, v0
        v_xor_b32 v107, 3, v106
        v_add_u32 v107, 1, v107
        v_cmp_gt_u32 vcc, 32, v0
        v_cndmask_b32 v106, v107, v106, vcc
        v_lshrrev_b32 v107, 4, v106
        v_and_b32 v106, 15, v106
        v_lshlrev_b32 v107, 14, v107
        v_lshl_add_u32 v106, v106, 4, v107
        v_bfe_u32 v107, v0, 4, 1
        v_mul_u32_u24 v107, {4*344064}, v107
        v_add_u32 v154, v106, v107
        s_lshr_b32 s43, s{S_J}, 2
        s_lshl_b32 s43, s43, 8
        s_and_b32 s{S_T1}, s{S_J}, 3
        s_lshl_b32 s{S_T1}, s{S_T1}, 2
        s_add_u32 s43, s43, s{S_T1}
        s_lshl_b32 s{S_T1}, s{SW}, 14
        s_add_u32 s43, s43, s{S_T1}
        s_add_u32 s43, s43, {VV}
        v_bfe_u32 v106, v0, 2, 2
        v_mul_u32_u24 v106, 2560, v106
        v_and_b32 v107, 1, v0
        v_mul_u32_u24 v107, 1280, v107
        v_add_u32 v106, v106, v107
        v_lshrrev_b32 v107, 4, v0
        v_lshlrev_b32 v107, 3, v107
        s_lshl_b32 s{S_T1}, s{SW}, 5
        v_add_u32 v107, s{S_T1}, v107
        v_sub_u32 v108, {1272 - 512}, v107
        v_and_b32 v109, 2, v0
        v_cmp_eq_u32 vcc, 2, v109
        v_cndmask_b32 v107, v107, v108, vcc
        v_add3_u32 v155, v106, v107, s{S_T0}
        s_mul_i32 s{S_T1}, s{SW}, 2560
        v_subrev_u32 v155, s{S_T1}, v155
        v_add_u32 v156, 512, v155
        v_cndmask_b32 v156, v155, v156, vcc
        v_mov_b32 v106, 128
        v_mov_b32 v107, -128
        v_cndmask_b32 v157, v106, v107, vcc
        v_and_b32 v106, 15, v0
        v_mul_u32_u24 v106, 80, v106
        v_lshrrev_b32 v107, 4, v0
        v_lshl_add_u32 v106, v107, 3, v106
        s_add_u32 s{S_T0}, s{S_T0}, {OT - PL}
        v_add_u32 v158, s{S_T0}, v106
        v_lshrrev_b32 v159, 5, v0
        v_mul_u32_u24 v159, 1280, v159
        v_add_u32 v159, s{S_T0}, v159
        v_lshl_add_u32 v163, v162, 3, v159
        v_lshl_add_u32 v159, v162, 4, v159''')
        if self.fused:
            g = self.L('p3go')
            A(f's_cmp_lg_u32 s{SW}, 0\ns_cbranch_scc1 {g}\nv_lshlrev_b32 v106, 4, v0\nv_add_u32 v106, {F2}, v106')
            self.gpoll('v106', 4, (1 << 42) - 1, 108)
            A(g + ':')
        self.sync(C_P3GO, sleep=1)
        self.stamp(6)
        for u in range(5):
            for r in range(4):
                A(f's_add_u32 s{S_T1}, s43, {u*65536 + r*344064}\nbuffer_load_dword v{106+4*u+r}, v154, {R_WS}, s{S_T1} offen sc1')
        for u in range(5):
            A(f's_waitcnt vmcnt({16-4*u})\nv_mfma_f32_16x16x32_bf16 {v(126+4*u,4)}, {v(106+4*u,4)}, {v(R8,4)}, 0')
        for u in range(5):
            A(f'''v_cvt_pk_bf16_f32 v{106+2*u}, v{126+4*u}, v{127+4*u}
            v_cvt_pk_bf16_f32 v{107+2*u}, v{128+4*u}, v{129+4*u}
            ds_write_b64 v156, {v(106+2*u,2)}''')
            if u < 4: A('v_add_u32 v156, v156, v157')
        self.sync(C_P3PL)
        self.dft_run(DA, U, TMP)
        for t in range(3):
            re, im = U + 8*t, U + 8*t + 4
            A(f'''v_cvt_pk_bf16_f32 v{130+4*t}, v{re}, v{re+1}
            v_cvt_pk_bf16_f32 v{131+4*t}, v{re+2}, v{re+3}
            v_cvt_pk_bf16_f32 v{132+4*t}, -v{im}, -v{im+1}
            v_cvt_pk_bf16_f32 v{133+4*t}, -v{im+2}, -v{im+3}''')
            if t == 2: A('s_mov_b32 exec_hi, 0')
            A(f'ds_write_b64 v158, {v(130+4*t,2)} offset:{32*t}\nds_write_b64 v158, {v(132+4*t,2)} offset:{32*t+1280}')
            if t == 2: A('s_mov_b32 exec_hi, -1')
        A(f'''s_waitcnt lgkmcnt(0)
        ds_read_b128 v[106:109], v159
        ds_read_b128 v[110:113], v159 offset:512
        ds_read_b64 v[114:115], v163 offset:1024
        s_waitcnt vmcnt(0) lgkmcnt(0)''')
        for r in range(10):
            A(f'''v_lshlrev_b32 v116, 16, v{106+r}
            v_and_b32 v117, 0xffff0000, v{106+r}
            v_lshlrev_b32 v118, 16, v{XR+r}
            v_and_b32 v119, 0xffff0000, v{XR+r}
            v_pk_add_f32 v[116:117], v[116:117], v[118:119]
            v_cvt_pk_bf16_f32 v{120+r}, v116, v117''')
        A(f'''s_mov_b32 s{S_T0}, {XA}
        buffer_store_dwordx4 v[120:123], v160, {R_WS}, s{S_T0} offen sc1
        buffer_store_dwordx4 v[124:127], v160, {R_WS}, s{S_T0} offen offset:512 sc1
        buffer_store_dwordx2 v[128:129], v161, {R_WS}, s{S_T0} offen offset:1024 sc1
        s_lshr_b32 s46, s{S_J}, 4
        s_lshl_b32 s46, s46, 7
        s_and_b32 s{S_T1}, s{S_J}, 15
        s_lshl_b32 s{S_T1}, s{S_T1}, 2
        s_add_u32 s46, s46, s{S_T1}
        s_add_u32 s46, s46, {F3}''')
        self.publish_group(C_P3PUB, 's46')

HEADER = open('cdna_kernels/' + KN + '.s.ref').read().split('; Override launch')[0]
def make(path, fused, stamps=False, opt=None):
    g = Gen(fused, stamps, opt)
    if fused: ks = [(KN + '_kernel', {'p1', 'aux', 'p2', 'p3', 'g1', 'g2'})]
    else: ks = [('ph1_kernel', {'p1', 'aux'}), ('ph2_kernel', {'g1', 'p2'}), ('ph3_kernel', {'p3'}), ('ph4_kernel', {'g2'})]
    txt = HEADER + g.build(ks)
    open(path, 'w').write(txt)
    build(path)
    return g
if __name__ == '__main__':
    g = make('multi.s', False); print('multi nops', g.nops)
    g = make('fused.s', True, stamps=True); print('fused nops', g.nops)
```

```python
import sys, json
from kgen import *
name, fused, stamps = sys.argv[1], int(sys.argv[2]), int(sys.argv[3])
opt = json.loads(sys.argv[4]) if len(sys.argv) > 4 else {}
g = make(f'exp/{name}.s', bool(fused), bool(stamps), opt)
print(name, 'nops', g.nops)
```

```python
import sys; sys.path.insert(0,'gen')
from asmlib import *
KN='parallel_sum__spectral_gfnet__glu_gated_swiglu__prompt_kernel'
def probe(r, k, mult, usemin=False):
    A = Asm()
    A.raw('.globl probe_kernel\n.p2align 8\n.type probe_kernel,@function\nprobe_kernel:')
    A(f'''s_cmp_lg_u32 s2, 0
    s_cbranch_scc1 Lq_end
    s_load_dwordx2 s[4:5], s[0:1], 72
    s_mov_b32 s6, 0x10000000
    s_mov_b32 s7, 0x20000
    v_mul_u32_u24 v1, 768, v0
    s_mov_b32 s8, {0x2000000 + r*64}
    s_waitcnt lgkmcnt(0)''')
    for q in range(4):
        A(f'buffer_load_dword v{2+q}, v1, s[4:7], s8 offen\nbuffer_load_dword v{6+q}, v1, s[4:7], s8 offen offset:{4*k}\ns_add_u32 s8, s8, {64*768}')
    op = 'min' if usemin else 'max'
    A(f'''s_waitcnt vmcnt(0)
    v_min_u32 v2, v2, v3
    v_min_u32 v4, v4, v5
    v_min_u32 v2, v2, v4
    v_{op}_u32 v6, v6, v7
    v_{op}_u32 v8, v8, v9
    v_{op}_u32 v6, v6, v8
    s_mov_b32 s10, -1
    s_mov_b32 s11, {-1 if usemin else 0}
    s_mov_b32 s12, 0
    Lq_r:
    s_nop 4
    v_readlane_b32 s13, v2, s12
    v_readlane_b32 s14, v6, s12
    s_nop 4
    s_min_u32 s10, s10, s13
    s_{op}_u32 s11, s11, s14
    s_add_u32 s12, s12, 1
    s_cmp_lt_u32 s12, 64
    s_cbranch_scc1 Lq_r
    s_sub_u32 s11, s11, s10
    s_min_u32 s11, s11, 20000
    s_mul_i32 s11, s11, {mult}
    s_memrealtime s[16:17]
    Lq_s:
    s_memrealtime s[18:19]
    s_waitcnt lgkmcnt(0)
    s_sub_u32 s20, s18, s16
    s_cmp_lt_u32 s20, s11
    s_cbranch_scc1 Lq_s
    Lq_end:
    s_endpgm''')
    return A.text()
def make(src, name, r, k, mult, usemin=False):
    m = open(f'exp/{src}.s').read()
    t = m.replace('; @launch grid=(256,1,1) block=(768,1,1) lds=163840', f'; @launch kernel={KN} grid=(256,1,1) block=(768,1,1) lds=163840\n; @launch kernel=probe_kernel grid=(1,1,1) block=(64,1,1) lds=0', 1)
    t = t.replace('.text\n', '.text\n' + probe(r, k, mult, usemin), 1)
    t += '.p2align 6\n' + kd('probe_kernel', 16, 32)
    p = f'exp/{name}.s'; open(p, 'w').write(t); build(p)
if __name__ == '__main__':
    src = sys.argv[1]
    for spec in sys.argv[2:]:
        n, r, k, mult, mn = spec.split(':')
        make(src, n, int(r), int(k), int(mult), mn == 'min')
```
